```python
import torch

def _softmax(x, axis=-1):
    return torch.softmax(x, dim=axis)
def _gelu(x):
    return torch.nn.functional.gelu(x, approximate="tanh")
def _silu(x):
    return torch.nn.functional.silu(x)
def _sigmoid(x):
    return torch.sigmoid(x)
def _layernorm(x, axis=-1, eps=1e-5):
    m = x.mean(dim=axis, keepdim=True)
    v = x.var(dim=axis, keepdim=True, unbiased=False)
    return (x - m) / torch.sqrt(v + eps)
def _scatter_add(tgt, idx, src, axis=0):
    return tgt.clone().index_add_(axis, idx, src)
def _segment_sum(src, seg, n):
    out = torch.zeros((n,) + src.shape[1:], dtype=src.dtype)
    return out.index_add_(0, seg, src)
def _pad(x, pw):
    flat = tuple(v for pair in reversed(pw) for v in pair)
    return torch.nn.functional.pad(x, flat)

kernel_name = 'standalone__linear_kernel_rfa__prompt'

def setup_inputs():

    _w = (lambda a: (lambda t: t.to(torch.bfloat16) if t.is_floating_point() else t)(torch.as_tensor(a)))
    B, H, Sq, Sk, D, M = 1, 16, 2048, 2048, 256, 64
    return {
        "q": _w((lambda *s: torch.randn(*s, dtype=torch.bfloat16) * 0.05)(B, H, Sq, D)),
        "k": _w((lambda *s: torch.randn(*s, dtype=torch.bfloat16) * 0.8)(B, H, Sk, D)),
        "v": _w((lambda *s: torch.randn(*s, dtype=torch.bfloat16) * 0.8)(B, H, Sk, D)),
        "omega": _w((lambda *s: torch.randn(*s, dtype=torch.bfloat16) * 0.8)(M, D)),
    }

def reference(q, k, v, omega):
    d = q.shape[-1]
    m = omega.shape[0]
    scale = float(d) ** -0.25
    qs = q * scale
    ks = k * scale
    q_proj = torch.einsum("bhsd,md->bhsm", qs, omega)
    k_proj = torch.einsum("bhsd,md->bhsm", ks, omega)
    q_sq = 0.5 * torch.einsum("bhsd,bhsd->bhs", qs, qs)[..., None]
    k_sq = 0.5 * torch.einsum("bhsd,bhsd->bhs", ks, ks)[..., None]
    inv_sqrt_m = float(m) ** -0.5
    phi_q = torch.exp(q_proj - q_sq) * inv_sqrt_m + 1e-6
    phi_k = torch.exp(k_proj - k_sq) * inv_sqrt_m + 1e-6
    kv = torch.einsum("bhsm,bhsd->bhmd", phi_k, v)
    z  = torch.einsum("bhsm->bhm", phi_k)
    num = torch.einsum("bhqm,bhmd->bhqd", phi_q, kv)
    den = torch.einsum("bhqm,bhm->bhq", phi_q, z)[..., None] + 1e-6
    return num / den
```

```python
import sys

HEAD = """; @launch grid=({grid},1,1) block=({block},1,1) lds={lds}
.amdgcn_target "amdgcn-amd-amdhsa--gfx950"
.text
.globl standalone__linear_kernel_rfa__prompt_kernel
.p2align 8
.type standalone__linear_kernel_rfa__prompt_kernel,@function
standalone__linear_kernel_rfa__prompt_kernel:
"""
TAIL = """
s_endpgm
.section .rodata,"a"
.p2align 6
.amdhsa_kernel standalone__linear_kernel_rfa__prompt_kernel
  .amdhsa_next_free_vgpr {nvgpr}
  .amdhsa_next_free_sgpr 102
  .amdhsa_accum_offset {accum}
  .amdhsa_group_segment_fixed_size 0
  .amdhsa_kernarg_size 56
  .amdhsa_user_sgpr_count 2
  .amdhsa_user_sgpr_kernarg_segment_ptr 1
  .amdhsa_system_sgpr_workgroup_id_x 1
.end_amdhsa_kernel
"""

def prologue(nwg=256):
    return f"""
  s_cmp_ge_u32 s2, {nwg}
  s_cbranch_scc1 L_end
  s_memrealtime s[40:41]
  s_load_dwordx4 s[28:31], s[0:1], 0
  s_load_dwordx2 s[32:33], s[0:1], 16
  s_load_dwordx2 s[34:35], s[0:1], 32
  s_load_dwordx2 s[36:37], s[0:1], 48
  s_waitcnt lgkmcnt(0)
  s_mov_b32 s8, s28
  s_mov_b32 s9, s29
  s_mov_b32 s10, 0x1000000
  s_mov_b32 s11, 0x20000
  s_mov_b32 s12, s30
  s_mov_b32 s13, s31
  s_mov_b32 s14, 0x1000000
  s_mov_b32 s15, 0x20000
  s_mov_b32 s16, s32
  s_mov_b32 s17, s33
  s_mov_b32 s18, 0x1000000
  s_mov_b32 s19, 0x20000
  s_mov_b32 s20, s34
  s_mov_b32 s21, s35
  s_mov_b32 s22, 0x1000000
  s_mov_b32 s23, 0x20000
  s_mov_b32 s24, s36
  s_mov_b32 s25, s37
  s_mov_b32 s26, 0x10000000
  s_mov_b32 s27, 0x20000
  s_lshl_b32 s3, s2, 16
  v_lshrrev_b32 v1, 6, v0
  v_and_b32 v2, 63, v0         ; lane
  s_nop 0
  v_readfirstlane_b32 s4, v1
"""

def stamp(n):
    return f"  s_memrealtime s[{40+2*n}:{41+2*n}]\n"

def write_stamps(n):
    s = "  s_waitcnt lgkmcnt(0)\n  s_cmp_lg_u32 s4, 0\n  s_cbranch_scc1 L_end\n"
    s += "  s_lshl_b32 s5, s2, 6\n"
    for i in range(n):
        s += f"  v_mov_b32 v{4+i}, s{40+2*i}\n"
    s += "  v_mov_b32 v3, s5\n  v_cmp_eq_u32 vcc, 0, v2\n  s_and_saveexec_b64 s[6:7], vcc\n"
    for i in range(n):
        s += f"  buffer_store_dword v{4+i}, v3, s[24:27], 0 offen offset:{4*i}\n"
    s += "  s_waitcnt vmcnt(0)\n"
    return s

def mb_coal(write=True, flags="", rowlane=False, nw=4, sflags=""):
    s = prologue()
    if not rowlane:
        s += "  s_lshl_b32 s5, s4, 14\n  s_add_u32 s3, s3, s5\n  v_lshlrev_b32 v3, 4, v2\n"
        def ld(dst, srd, j):
            return f"  buffer_load_dwordx4 v[{dst}:{dst+3}], v3, s[{srd}:{srd+3}], s3 offen offset:{(j%4)*1024} {flags}\n" + ("  s_add_u32 s3, s3, 4096\n" if j%4==3 else "")
        fix = "  s_sub_u32 s3, s3, 16384\n"
    else:
        s += "  s_lshl_b32 s5, s4, 14\n  s_add_u32 s3, s3, s5\n  v_and_b32 v3, 31, v2\n  v_lshlrev_b32 v3, 9, v3\n  v_lshrrev_b32 v4, 5, v2\n  v_lshlrev_b32 v4, 4, v4\n  v_add_u32 v3, v3, v4\n"
        def ld(dst, srd, j):
            return f"  buffer_load_dwordx4 v[{dst}:{dst+3}], v3, s[{srd}:{srd+3}], s3 offen offset:{j*32} {flags}\n"
        fix = ""
    if rowlane:
        s += "  v_lshlrev_b32 v5, 4, v2\n"
    for j in range(16): s += ld(16+4*j, 12, j)
    s += fix
    if rowlane:
        for j in range(16):
            s += f"  buffer_load_dwordx4 v[{80+4*j}:{83+4*j}], v5, s[16:19], s3 offen offset:{(j%4)*1024} {flags}\n" + ("  s_add_u32 s3, s3, 4096\n" if j%4==3 else "")
        s += "  s_sub_u32 s3, s3, 16384\n"
    else:
        for j in range(16): s += ld(80+4*j, 16, j)
        s += fix
    for j in range(16): s += ld(144+4*j, 8, j)
    s += fix
    s += stamp(1)
    s += "  s_waitcnt vmcnt(32)\n" + stamp(2)
    s += "  s_waitcnt vmcnt(16)\n" + stamp(3)
    s += "  s_waitcnt vmcnt(0)\n" + stamp(4)
    if write:
        s += "  v_lshlrev_b32 v3, 4, v2\n"
        for j in range(16):
            s += f"  v_xor_b32 v{144+4*j}, v{144+4*j}, v{16+4*j}\n  v_xor_b32 v{145+4*j}, v{145+4*j}, v{80+4*j}\n"
        for j in range(16):
            s += f"  buffer_store_dwordx4 v[{144+4*j}:{147+4*j}], v3, s[20:23], s3 offen offset:{(j%4)*1024} {sflags}\n" + ("  s_add_u32 s3, s3, 4096\n" if j%4==3 else "")
        s += stamp(5)
        s += "  s_waitcnt vmcnt(0)\n"
    s += stamp(6)
    s += write_stamps(7)
    s += "L_end:\n"
    return HEAD.format(grid=256, block=256, lds=0) + s + TAIL.format(nvgpr=256, accum=256)

def mb_dma(write=True, flags=""):
    s = prologue()
    s += "  s_lshl_b32 s5, s4, 14\n  s_add_u32 s3, s3, s5\n  v_lshlrev_b32 v3, 4, v2\n"
    def dma(srd, ldsbase):
        t = ""
        for j in range(16):
            if j % 4 == 0:
                t += f"  s_add_u32 s6, s5, {ldsbase + j*1024}\n  s_mov_b32 m0, s6\n  s_nop 0\n"
            t += f"  buffer_load_dwordx4 v3, s[{srd}:{srd+3}], s3 offen offset:{(j%4)*1024} {flags} lds\n"
            if j % 4 == 3: t += "  s_add_u32 s3, s3, 4096\n"
        t += "  s_sub_u32 s3, s3, 16384\n"
        return t
    s += dma(12, 0) + dma(16, 65536)
    s += stamp(1)
    s += "  s_waitcnt vmcnt(16)\n" + stamp(2)
    s += dma(8, 0)
    s += "  s_waitcnt vmcnt(16)\n" + stamp(3)
    s += "  s_waitcnt vmcnt(0)\n" + stamp(4)
    if write:
        s += "  v_lshlrev_b32 v4, 4, v2\n  v_add_u32 v4, s5, v4\n"
        for j in range(16):
            s += f"  ds_read_b128 v[{144+4*j}:{147+4*j}], v4 offset:{j*1024}\n"
        s += "  s_waitcnt lgkmcnt(0)\n"
        for j in range(16):
            s += f"  buffer_store_dwordx4 v[{144+4*j}:{147+4*j}], v3, s[20:23], s3 offen offset:{(j%4)*1024}\n" + ("  s_add_u32 s3, s3, 4096\n" if j%4==3 else "")
        s += stamp(5)
        s += "  s_waitcnt vmcnt(0)\n"
    s += stamp(6)
    s += write_stamps(7)
    s += "L_end:\n"
    return HEAD.format(grid=256, block=256, lds=131072) + s + TAIL.format(nvgpr=256, accum=256)

open("mb_coal.s","w").write(mb_coal())
open("mb_coal_nw.s","w").write(mb_coal(write=False))
open("mb_row.s","w").write(mb_coal(rowlane=True))
open("mb_row_nw.s","w").write(mb_coal(rowlane=True, write=False))
open("mb_coal_nt.s","w").write(mb_coal(flags="nt"))
open("mb_dma.s","w").write(mb_dma())
open("mb_dma_nw.s","w").write(mb_dma(write=False))
open("mb_dma_nt.s","w").write(mb_dma(flags="nt"))

open("mb_st_nt.s","w").write(mb_coal(sflags="nt"))
open("mb_st_sc1.s","w").write(mb_coal(sflags="sc1"))
open("mb_st_sc01.s","w").write(mb_coal(sflags="sc0 sc1"))
open("mb_st_sc01nt.s","w").write(mb_coal(sflags="sc0 sc1 nt"))
open("mb_st_sc1nt.s","w").write(mb_coal(sflags="sc1 nt"))
```

```python
from gen_mb import HEAD, TAIL, prologue
def l2(delta, stflag="", ldflag="sc1", nld=8, region="out", pretouch=False, sleep=2):
    s = prologue()
    srd = "s[20:23]" if region == "out" else "s[24:27]"
    s += "  s_lshl_b32 s5, s4, 13\n  s_add_u32 s60, s3, s5\n  v_lshlrev_b32 v3, 4, v2\n"
    if pretouch:
        for j in range(8):
            s += f"  s_add_u32 s5, s60, {j*1024}\n  buffer_load_dwordx4 v[16:19], v3, {srd}, s5 offen\n"
        s += "  s_waitcnt vmcnt(0)\n"
    for j in range(8):
        s += f"  s_add_u32 s5, s60, {j*1024}\n  buffer_store_dwordx4 v[16:19], v3, {srd}, s5 offen {stflag}\n"
    s += "  s_waitcnt vmcnt(0)\n"
    s += "  s_sleep 127\n" * sleep if sleep else "  s_sleep 20\n"
    s += f"  s_add_u32 s6, s2, {delta}\n  s_and_b32 s6, s6, 255\n  s_lshl_b32 s6, s6, 16\n  s_lshl_b32 s5, s4, 13\n  s_add_u32 s61, s6, s5\n"
    s += "  s_barrier\n  s_memtime s[42:43]\n"
    for j in range(nld):
        s += f"  s_add_u32 s5, s61, {j*1024}\n  buffer_load_dwordx4 v[{20+4*j}:{23+4*j}], v3, {srd}, s5 offen {ldflag}\n"
    s += f"  s_waitcnt vmcnt({nld-1})\n  s_memtime s[44:45]\n  s_waitcnt vmcnt(0)\n  s_memtime s[46:47]\n  s_waitcnt lgkmcnt(0)\n"
    s += "  s_sub_u32 s44, s44, s42\n  s_sub_u32 s46, s46, s42\n  v_mov_b32 v60, s44\n  v_mov_b32 v61, s46\n  s_lshl_b32 s5, s2, 6\n  v_mov_b32 v6, s5\n"
    s += "  s_cmp_lg_u32 s4, 0\n  s_cbranch_scc1 L_end\n  v_cmp_eq_u32 vcc, 0, v2\n  s_and_saveexec_b64 s[6:7], vcc\n"
    s += "  buffer_store_dword v60, v6, s[24:27], 0 offen offset:0\n  buffer_store_dword v61, v6, s[24:27], 0 offen offset:4\n  s_waitcnt vmcnt(0)\nL_end:\n"
    return HEAD.format(grid=256, block=256, lds=0) + s + TAIL.format(nvgpr=64, accum=64)
open("l2_own.s","w").write(l2(0))
open("l2_same.s","w").write(l2(8))
open("l2_same_pl.s","w").write(l2(8, ldflag=""))
open("l2_cross.s","w").write(l2(1, stflag="sc1"))
open("l2_same1.s","w").write(l2(8, nld=1))
open("l2_same_sc1st.s","w").write(l2(8, stflag="sc1"))

open("l2_nt.s","w").write(l2(8, stflag="nt"))
open("l2_sc0.s","w").write(l2(8, stflag="sc0"))
open("l2_pre.s","w").write(l2(8, pretouch=True))
open("l2_pre_own.s","w").write(l2(0, pretouch=True))
open("l2_short.s","w").write(l2(8, sleep=0))
open("l2_ws.s","w").write(l2(8, region="ws"))
```
